```python
import torch

def _softmax(x, axis=-1):
    return torch.softmax(x, dim=axis)
def _gelu(x):
    return torch.nn.functional.gelu(x, approximate="tanh")
def _silu(x):
    return torch.nn.functional.silu(x)
def _sigmoid(x):
    return torch.sigmoid(x)
def _layernorm(x, axis=-1, eps=1e-5):
    m = x.mean(dim=axis, keepdim=True)
    v = x.var(dim=axis, keepdim=True, unbiased=False)
    return (x - m) / torch.sqrt(v + eps)
def _scatter_add(tgt, idx, src, axis=0):
    return tgt.clone().index_add_(axis, idx, src)
def _segment_sum(src, seg, n):
    out = torch.zeros((n,) + src.shape[1:], dtype=src.dtype)
    return out.index_add_(0, seg, src)
def _pad(x, pw):
    flat = tuple(v for pair in reversed(pw) for v in pair)
    return torch.nn.functional.pad(x, flat)

kernel_name = 'sequential_preLN__ssm_conv_h3__glu_gated_glu__prompt'

def setup_inputs():

    _w = (lambda a: (lambda t: t.to(torch.bfloat16) if t.is_floating_point() else t)(torch.as_tensor(a)))
    def _A_setup():
        B, S, D = 1, 2048, 512
        ks = 4
        return {
            "q": _w((lambda *s: torch.randn(*s, dtype=torch.bfloat16) * 0.05)(B, S, D)),
            "k": _w((lambda *s: torch.randn(*s, dtype=torch.bfloat16) * 0.4)(B, S, D)),
            "v": _w((lambda *s: torch.randn(*s, dtype=torch.bfloat16) * 0.4)(B, S, D)),
            "shift_k": _w((lambda *s: torch.randn(*s, dtype=torch.bfloat16) * 0.4)(D, ks) * 0.5),
            "ssm_k": _w((lambda *s: torch.randn(*s, dtype=torch.bfloat16) * 0.4)(D, S) * (1.0 / S ** 0.5)),
            "ssm_D": _w((lambda *s: torch.randn(*s, dtype=torch.bfloat16) * 0.4)(D)),
        }
    _A_in = _A_setup()

    def _B_setup():
        B, S, D, F = 1, 2048, 512, 1792
        return {
            "x": _w((lambda *s: torch.randn(*s, dtype=torch.bfloat16) * 0.05)(B, S, D)),
            "w_gate": _w((lambda *s: torch.randn(*s, dtype=torch.bfloat16) * 0.05)(D, F)),
            "w_up": _w((lambda *s: torch.randn(*s, dtype=torch.bfloat16) * 0.05)(D, F)),
            "w_down": _w((lambda *s: torch.randn(*s, dtype=torch.bfloat16) * 0.05)(F, D)),
        }
    _B_in = _B_setup()

    return {
        "A_q": _A_in["q"],
        "A_k": _A_in["k"],
        "A_v": _A_in["v"],
        "A_shift_k": _A_in["shift_k"],
        "A_ssm_k": _A_in["ssm_k"],
        "A_ssm_D": _A_in["ssm_D"],
        "B_x": _B_in["x"],
        "B_w_gate": _B_in["w_gate"],
        "B_w_up": _B_in["w_up"],
        "B_w_down": _B_in["w_down"],
    }

def reference(A_q, A_k, A_v, A_shift_k, A_ssm_k, A_ssm_D, B_x, B_w_gate, B_w_up, B_w_down):
    def _A_ref(q, k, v, shift_k, ssm_k, ssm_D):
        B, S, D = q.shape
        ks = shift_k.shape[-1]
        k_pad = _pad(k, ((0, 0), (ks - 1, 0), (0, 0)))
        k_shift = torch.zeros_like(k)
        for t in range(ks):
            k_shift = k_shift + k_pad[:, t:t + S, :] * shift_k[:, ks - 1 - t][None, None, :]
        kv = k_shift * v
        L = 2 * S
        kv_pad = _pad(kv, ((0, 0), (0, S), (0, 0)))
        kf_pad = _pad(ssm_k, ((0, 0), (0, S)))
        kv_f = (lambda x, axes=(-2,-1): torch.fft.rfft2(x.float(), dim=axes))(kv_pad[:, None, :, :], axes=(1, 2))
        kf_f = (lambda x, axes=(-2,-1): torch.fft.rfft2(x.float(), dim=axes))(kf_pad[:, None, :], axes=(1, 2))
        kf_f = (lambda x, *d: x.permute(*d))(kf_f, 1, 2, 0)
        y_f = kv_f * kf_f[None, :, :, :]
        y = (lambda x, s, axes=(-2,-1): torch.fft.irfft2(x, s=s, dim=axes).to(torch.bfloat16))(y_f, (1, L), axes=(1, 2))[:, 0, :S, :]
        y = y + kv * ssm_D[None, None, :]
        return q * y

    def _B_ref(x, w_gate, w_up, w_down):
        g = torch.einsum("bsd,df->bsf", x, w_gate)
        u = torch.einsum("bsd,df->bsf", x, w_up)
        h = _sigmoid(g) * u
        return torch.einsum("bsf,fd->bsd", h, w_down)

    x = A_q
    h = x + _A_ref(_layernorm(x, axis=-1), A_k, A_v, A_shift_k, A_ssm_k, A_ssm_D)
    h2 = h + _B_ref(_layernorm(h, axis=-1), B_w_gate, B_w_up, B_w_down)
    return h2
```

```python
NAME = "sequential_preLN__ssm_conv_h3__glu_gated_glu__prompt"

class Asm:
    def __init__(self):
        self.launches = []
        self.body = []
        self.descs = []
        self.uid = 0
    def __call__(self, s=""):
        for line in s.split("\n"):
            line = line.strip()
            if not line: continue
            if line.endswith(":"):
                self.body.append(line)
            else:
                self.body.append("    " + line)
    def label(self, base="L"):
        self.uid += 1
        return f"{base}_{self.uid}"
    def launch(self, kernel, grid, block=256, lds=0):
        self.launches.append(f"; @launch kernel={kernel} grid=({grid},1,1) block=({block},1,1) lds={lds}")
    def begin(self, kernel):
        self.body.append(".text")
        self.body.append(f".globl {kernel}")
        self.body.append(".p2align 8")
        self.body.append(f".type {kernel},@function")
        self.body.append(f"{kernel}:")
    def end(self, kernel, vgpr=256, agpr=0, sgpr=102):
        acc = (vgpr + 3) // 4 * 4
        nfv = acc + agpr if agpr else vgpr
        self.descs.append(f""".amdhsa_kernel {kernel}
  .amdhsa_next_free_vgpr {nfv}
  .amdhsa_next_free_sgpr {sgpr}
  .amdhsa_accum_offset {acc}
  .amdhsa_group_segment_fixed_size 0
  .amdhsa_kernarg_size 104
  .amdhsa_user_sgpr_count 2
  .amdhsa_user_sgpr_kernarg_segment_ptr 1
  .amdhsa_system_sgpr_workgroup_id_x 1
  .amdhsa_float_denorm_mode_32 3
  .amdhsa_float_denorm_mode_16_64 3
.end_amdhsa_kernel""")
    def text(self, header=""):
        out = []
        if header: out += ["; " + l for l in header.strip().split("\n")]
        out += self.launches
        out.append('.amdgcn_target "amdgcn-amd-amdhsa--gfx950"')
        out += self.body
        out.append('.section .rodata,"a"')
        for d in self.descs:
            out.append(".p2align 6")
            out.append(d)
        return "\n".join(out) + "\n"
    def write(self, path, header=""):
        open(path, "w").write(self.text(header))
```

```python
import sys
from asmlib import *

KN = NAME + "_kernel"
WS_FLAG0, WS_FLAG1, WS_FLAG2 = 0x1000, 0x5000, 0x9000
WS_ST, WS_STAMP = 0x10000, 0x20000
WS_Z, WS_XT, WS_H, WS_ACT = 0x100000, 0x300000, 0x500000, 0x700000
STG_SLOTS = 24
L_STG = 0
L_P0Z, L_P0X = 98304, 106496
L_RED = 98304
L_KF, KF_PITCH = 114688, 4160
L_Z, Z_PITCH = 147968, 4608
L_ST = 157184
LDS_BYTES = 163840
SPIN_MAX = 200000

class K(Asm):
    def __init__(self, stamps=False):
        super().__init__()
        self.vmq = []; self.lgq = []; self.stamps = stamps; self.nstamp = 0
    def vm(self, s, tag=None):
        self(s); self.vmq.append(tag)
    def wait_vm(self, tag=None):
        if tag is None:
            self("s_waitcnt vmcnt(0)"); self.vmq = []; return
        idx = max(i for i, t in enumerate(self.vmq) if t == tag)
        n = len(self.vmq) - 1 - idx
        assert n <= 63
        self(f"s_waitcnt vmcnt({n})"); self.vmq = self.vmq[idx + 1:]
    def has_vm(self, tag): return tag in self.vmq
    def ds(self, s, tag=None):
        self(s); self.lgq.append(tag)
    def wait_lg(self, tag=None):
        if tag is None:
            self("s_waitcnt lgkmcnt(0)"); self.lgq = []; return
        if tag not in self.lgq: return
        idx = max(i for i, t in enumerate(self.lgq) if t == tag)
        n = min(len(self.lgq) - 1 - idx, 15)
        self(f"s_waitcnt lgkmcnt({n})"); self.lgq = self.lgq[len(self.lgq) - n:] if n else []
    def stamp(self):
        if not self.stamps: return
        i = self.nstamp; self.nstamp += 1
        assert i < 19
        self(f"s_memrealtime s[{64+2*i}:{65+2*i}]\ns_waitcnt lgkmcnt(0)"); self.lgq = []

def v(i, n=1): return f"v{i}" if n == 1 else f"v[{i}:{i+n-1}]"
def ar(i, n=1): return f"a{i}" if n == 1 else f"a[{i}:{i+n-1}]"

S_Q, S_K, S_V, S_SK, S_KF, S_D = 4, 6, 8, 10, 12, 14
S_WG, S_WU, S_WD, S_OUT, S_DBG, S_WS = 18, 20, 22, 24, 26, 28
S_NONCE, S_DV, S_SRD = 30, 31, 32
S_CG, S_TB = 36, 37
S_SELLO, S_SELHI, S_ONES = 38, 39, 40
S_T0, S_T1, S_T2, S_T3 = 41, 42, 43, 44
S_PA = 46
S_PB = 48
S_PC = 50
S_STG = 52
S_SPIN = 53
S_RB, S_FT = 54, 55
S_ACTV = 56
S_PD = 58
def sp(i): return f"s[{i}:{i+1}]"

def ws_ptr(a, dst, off):
    a(f"s_add_u32 s{dst}, s{S_WS}, {off}\ns_addc_u32 s{dst+1}, s{S_WS+1}, 0")

def publish(a, flag_off, idx_sreg):
    a.wait_vm()
    a("s_barrier")
    sk = a.label("pub")
    a(f"""
    s_cmp_lg_u32 s3, 0
    s_cbranch_scc1 {sk}
    s_lshl_b32 s{S_T0}, s{idx_sreg}, 6
    s_add_u32 s{S_T0}, s{S_T0}, {flag_off}
    v_mov_b32 v250, s{S_T0}
    v_mov_b32 v251, s{S_NONCE}
    s_mov_b64 exec, 1
    global_store_dword v250, v251, {sp(S_WS)} sc1
    s_mov_b64 exec, -1
    {sk}:
    """)

def poll(a, nload, setup):
    sk = a.label("pollsk"); lp = a.label("poll")
    a(f"s_cmp_lg_u32 s3, 0\ns_cbranch_scc1 {sk}")
    a(setup)
    a(f"s_mov_b32 s{S_SPIN}, 0\n{lp}:")
    for i in range(nload): a(f"global_load_dword v{252+i}, v250, {sp(S_WS)} offset:{64*i} sc1")
    a(f"s_add_u32 s{S_SPIN}, s{S_SPIN}, 1\ns_waitcnt vmcnt(0)")
    for i in range(nload): a(f"v_xor_b32 v{252+i}, s{S_NONCE}, v{252+i}")
    for i in range(1, nload): a(f"v_or_b32 v252, v252, v{252+i}")
    a(f"""
    v_cmp_ne_u32 vcc, 0, v252
    s_cmp_ge_u32 s{S_SPIN}, {SPIN_MAX}
    s_cbranch_scc1 {sk}
    s_cbranch_vccnz {lp}
    {sk}:
    s_barrier
    """)

def bf16r(a, reg):
    a(f"v_cvt_pk_bf16_f32 v{reg}, v{reg}, v{reg}\nv_lshlrev_b32 v{reg}, 16, v{reg}")

def ln_finalize(a, s1, s2, tmp):
    a(f"""
    v_mul_f32 v{s1}, 0x3b000000, v{s1}
    v_mul_f32 v{tmp}, v{s1}, v{s1}
    v_mov_b32 v{tmp+1}, 0x3b000000
    v_fma_f32 v{s2}, v{s2}, v{tmp+1}, -v{tmp}
    v_max_f32 v{s2}, 0, v{s2}
    """)
    bf16r(a, s1); bf16r(a, s2)
    a(f"v_add_f32 v{s2}, 0x3727c5ac, v{s2}")
    bf16r(a, s2)
    a(f"v_sqrt_f32 v{s2}, v{s2}\ns_nop 0")
    bf16r(a, s2)

def gen(path, stamps=False):
    a = K(stamps)
    a.launches.append(f"; @launch grid=(256,1,1) block=(256,1,1) lds={LDS_BYTES}")
    a.begin(KN)
    a(f"""
    s_cmp_ge_u32 s2, 256
    s_cbranch_scc1 L_end
    s_load_dwordx16 s[4:19], s[0:1], 0
    s_load_dwordx8 s[20:27], s[0:1], 64
    s_load_dwordx2 s[28:29], s[0:1], 96
    v_lshrrev_b32 v1, 6, v0
    s_and_b32 s{S_CG}, s2, 7
    v_readfirstlane_b32 s3, v1
    s_lshr_b32 s{S_TB}, s2, 3
    v_and_b32 v2, 63, v0                    ; lane
    v_and_b32 v3, 7, v0                     ; co
    v_lshrrev_b32 v4, 3, v0                 ; rg
    s_lshl_b32 s{S_T0}, s{S_TB}, 16         ; t0*1024
    s_lshl_b32 s{S_T1}, s{S_CG}, 7
    s_add_u32 s{S_T0}, s{S_T0}, s{S_T1}
    v_lshlrev_b32 v5, 11, v4
    v_lshl_add_u32 v5, v3, 4, v5
    v_add_u32 v5, s{S_T0}, v5               ; vb
    v_add_u32 v6, 0xfffff400, v5            ; -3072
    v_add_u32 v7, 0xfffff800, v5            ; -2048
    v_add_u32 v8, 0xfffffc00, v5            ; -1024
    s_lshl_b32 s{S_T1}, s{S_CG}, 9
    v_lshlrev_b32 v9, 6, v3
    v_add_u32 v9, s{S_T1}, v9
    s_mov_b32 s{S_SRD+2}, 0x200000
    s_mov_b32 s{S_SRD+3}, 0x20000
    s_waitcnt lgkmcnt(0)
    s_mov_b32 s{S_SRD}, s{S_K}
    s_and_b32 s{S_SRD+1}, s{S_K+1}, 0xffff
    """)
    a.stamp()
    KR, VR, XR, SW, SR, KX = 16, 36, 44, 52, 68, 76
    srd = f"s[{S_SRD}:{S_SRD+3}]"
    a.vm(f"buffer_load_dwordx4 {v(KR,4)}, v6, {srd}, 0 offen", "kv")
    a.vm(f"buffer_load_dwordx4 {v(KR+4,4)}, v7, {srd}, 0 offen", "kv")
    a.vm(f"buffer_load_dwordx4 {v(KR+8,4)}, v8, {srd}, 0 offen", "kv")
    a.vm(f"buffer_load_dwordx4 {v(KR+12,4)}, v5, {srd}, 0 offen", "kv")
    a.vm(f"buffer_load_dwordx4 {v(KR+16,4)}, v5, {srd}, 0 offen offset:1024", "kv")
    a.vm(f"global_load_dwordx4 {v(VR,4)}, v5, {sp(S_V)}", "kv")
    a.vm(f"global_load_dwordx4 {v(VR+4,4)}, v5, {sp(S_V)} offset:1024", "kv")
    for i in range(4): a.vm(f"global_load_dwordx4 {v(SW+4*i,4)}, v9, {sp(S_SK)} offset:{16*i}", "kv")
    a.vm(f"global_load_dwordx4 {v(XR,4)}, v5, {sp(S_Q)}", "x")
    a.vm(f"global_load_dwordx4 {v(XR+4,4)}, v5, {sp(S_Q)} offset:1024", "x")
    a(f"s_getpc_b64 {sp(S_PA)}\nL_pc:\nv_lshlrev_b32 v10, 7, v0\nv_min_u32 v10, L_end-L_pc, v10")
    a.vm(f"global_load_dword v11, v10, {sp(S_PA)}", "x")
    a(f"""
    s_lshl_b32 s{S_T0}, s2, 13
    s_lshl_b32 s{S_T1}, s3, 11
    s_add_u32 s{S_T0}, s{S_T0}, s{S_T1}
    v_lshrrev_b32 v12, 5, v2
    v_lshlrev_b32 v12, 10, v12
    v_and_b32 v13, 31, v2
    v_lshl_add_u32 v12, v13, 4, v12
    v_add_u32 v12, s{S_T0}, v12
    """)
    a.vm(f"global_load_dwordx4 {v(SR,4)}, v12, {sp(S_Q)}", "x")
    a.vm(f"global_load_dwordx4 {v(SR+4,4)}, v12, {sp(S_Q)} offset:512", "x")
    a(f"""
    s_lshl_b32 s{S_T2}, s{S_CG}, 6
    s_lshl_b32 s{S_T1}, s{S_TB}, 1
    s_add_u32 s{S_T2}, s{S_T2}, s{S_T1}     ; ch0
    s_lshl_b32 s{S_T0}, s{S_T2}, 12
    v_lshlrev_b32 v13, 4, v0
    v_add_u32 v13, s{S_T0}, v13
    v_add_u32 v14, 4096, v13
    v_subrev_u32 v15, 4, v13
    v_max_i32 v15, 0, v15
    s_lshl_b32 s{S_T1}, s{S_T2}, 1
    s_load_dword s{S_DV}, {sp(S_D)}, s{S_T1}
    s_load_dword s{S_NONCE}, {sp(S_WS)}, 0
    """)
    a.vm(f"global_load_dwordx4 {v(KX,4)}, v13, {sp(S_KF)}", "kf")
    a.vm(f"global_load_dwordx4 {v(KX+4,4)}, v14, {sp(S_KF)}", "kf")
    a.vm(f"global_load_dword {v(KX+8)}, v15, {sp(S_KF)}", "kf")
    a.vm(f"global_load_dword {v(KX+9)}, v14, {sp(S_KF)} offset:-4", "kf")
    a(f"""
    s_mov_b32 s{S_SELLO}, 0x05040100
    s_mov_b32 s{S_SELHI}, 0x07060302
    s_mov_b32 s{S_ONES}, 0x3f803f80
    s_mul_i32 s{S_STG}, s3, {STG_SLOTS*1024}
    """)
    a(f"""
    v_subrev_u32 v6, v4, 31                 ; pz = 31 - rg
    """.replace("v_subrev_u32 v6, v4, 31", "v_sub_u32 v6, 31, v4"))
    a(f"""
    v_lshrrev_b32 v7, 2, v6
    v_xor_b32 v7, v7, v3
    v_lshlrev_b32 v7, 4, v7
    v_and_b32 v6, 3, v6
    v_lshl_add_u32 v6, v6, 2, v7
    v_lshl_add_u32 v6, v3, 10, v6
    v_add_u32 v6, {L_P0Z}, v6
    v_lshrrev_b32 v7, 2, v4
    v_xor_b32 v7, v7, v3
    v_lshlrev_b32 v7, 4, v7
    v_and_b32 v8, 3, v4
    v_lshl_add_u32 v7, v8, 2, v7
    v_lshl_add_u32 v7, v3, 10, v7
    v_add_u32 v7, {L_P0X}, v7
    """)
    a(f"""
    v_mov_b32 v90, 0
    v_and_b32 v8, 127, v0
    v_lshlrev_b32 v8, 2, v8
    v_lshrrev_b32 v9, 7, v0
    v_mul_u32_u24 v9, {Z_PITCH}, v9
    v_add_u32 v8, v8, v9
    v_add_u32 v8, {L_Z+4096}, v8
    """)
    a.ds("ds_write_b32 v8, v90")
    a(f"""
    v_lshrrev_b32 v9, 4, v0
    v_and_b32 v8, 15, v0
    v_lshrrev_b32 v10, 1, v9
    v_and_b32 v10, 1, v10
    v_add_u32 v10, 8, v10                   ; limit
    v_cmp_lt_u32 vcc, v8, v10
    v_cmp_gt_u32 s[{S_PB}:{S_PB+1}], 8, v9
    v_mul_u32_u24 v9, {KF_PITCH}, v9
    v_lshl_add_u32 v8, v8, 2, v9
    v_add_u32 v8, {L_KF}, v8
    s_and_b64 vcc, vcc, s[{S_PB}:{S_PB+1}]
    s_and_saveexec_b64 s[{S_PB}:{S_PB+1}], vcc
    ds_write_b32 v8, v90
    s_mov_b64 exec, -1
    """)
    a.wait_vm("kv")
    a.stamp()
    T = 92
    OUTZ = 124
    for j in range(4):
        for h in range(2):
            i = 2*j + h; sel = S_SELLO if h == 0 else S_SELHI
            t = T + 4*i
            a(f"v_perm_b32 v{t}, v{KR+8+j}, v{KR+12+j}, s{sel}")
            a(f"v_perm_b32 v{t+1}, v{KR+12+j}, v{KR+16+j}, s{sel}")
            a(f"v_perm_b32 v{t+2}, v{KR+j}, v{KR+4+j}, s{sel}")
            a(f"v_perm_b32 v{t+3}, v{KR+4+j}, v{KR+8+j}, s{sel}")
    O = 132
    for i in range(8):
        t = T + 4*i
        a(f"v_dot2_f32_bf16 v{O+2*i}, v{t}, v{SW+2*i}, 0")
        a(f"v_dot2_f32_bf16 v{O+2*i+1}, v{t+1}, v{SW+2*i}, 0")
    for i in range(8):
        t = T + 4*i
        a(f"v_dot2_f32_bf16 v{O+2*i}, v{t+2}, v{SW+2*i+1}, v{O+2*i}")
        a(f"v_dot2_f32_bf16 v{O+2*i+1}, v{t+3}, v{SW+2*i+1}, v{O+2*i+1}")
    for j in range(4):
        for r in range(2):
            a(f"v_lshlrev_b32 v{T+4*j+r}, 16, v{VR+4*r+j}")
            a(f"v_and_b32 v{T+4*j+2+r}, 0xffff0000, v{VR+4*r+j}")
    for i in range(8):
        for r in range(2):
            a(f"v_mul_f32 v{O+2*i+r}, v{O+2*i+r}, v{T+2*i+r}")
    for i in range(8):
        a(f"v_cvt_pk_bf16_f32 v{OUTZ+i}, v{O+2*i+1}, v{O+2*i}")
        a.ds(f"ds_write_b32 v6, v{OUTZ+i} offset:{128*i}")
    a.wait_vm("x")
    for j in range(4):
        for h in range(2):
            i = 2*j + h; sel = S_SELLO if h == 0 else S_SELHI
            a(f"v_perm_b32 v{T+i}, v{XR+4+j}, v{XR+j}, s{sel}")
            a.ds(f"ds_write_b32 v7, v{T+i} offset:{128*i}")
    S1, S2 = 100, 101
    a(f"v_dot2_f32_bf16 v{S1}, v{SR}, s{S_ONES}, 0\nv_dot2_f32_bf16 v{S2}, v{SR}, v{SR}, 0")
    for i in range(1, 8):
        a(f"v_dot2_f32_bf16 v{S1}, v{SR+i}, s{S_ONES}, v{S1}\nv_dot2_f32_bf16 v{S2}, v{SR+i}, v{SR+i}, v{S2}")
    a("s_nop 2")
    for dpp in ("quad_perm:[1,0,3,2]", "quad_perm:[2,3,0,1]", "row_half_mirror", "row_mirror"):
        a(f"v_add_f32_dpp v{S1}, v{S1}, v{S1} {dpp} row_mask:0xf bank_mask:0xf")
        a(f"v_add_f32_dpp v{S2}, v{S2}, v{S2} {dpp} row_mask:0xf bank_mask:0xf\ns_nop 0")
    a(f"v_add_f32_dpp v{S1}, v{S1}, v{S1} row_bcast:15 row_mask:0xa bank_mask:0xf")
    a(f"v_add_f32_dpp v{S2}, v{S2}, v{S2} row_bcast:15 row_mask:0xa bank_mask:0xf")
    ln_finalize(a, S1, S2, 102)
    a(f"""
    v_rcp_f32 v{S2}, v{S2}
    v_lshrrev_b32 v8, 5, v0
    v_lshlrev_b32 v8, 3, v8
    v_add_u32 v8, {L_ST}, v8
    s_mov_b32 exec_lo, 0x80000000
    s_mov_b32 exec_hi, 0x80000000
    ds_write_b64 v8, v[{S1}:{S2}]
    s_mov_b64 exec, -1
    """)
    a(f"""
    v_xor_b32 v8, v3, v1
    v_lshlrev_b32 v8, 4, v8
    v_lshl_add_u32 v8, v4, 7, v8            ; c*128 + ...
    v_xor_b32 v9, 64, v8
    v_add_u32 v8, {L_P0Z}, v8
    v_add_u32 v9, {L_P0Z+4096}, v9
    s_lshl_b32 s{S_T0}, s{S_CG}, 18         ; c0*4096
    s_lshl_b32 s{S_T1}, s{S_TB}, 7          ; t0*2
    v_lshlrev_b32 v10, 12, v4
    v_lshl_add_u32 v10, v3, 4, v10
    v_add_u32 v10, s{S_T0}, v10
    v_add_u32 v11, s{S_T1}, v10
    s_sub_u32 s{S_T1}, 3968, s{S_T1}
    v_add_u32 v10, s{S_T1}, v10             ; z offset
    v_add_u32 v12, 0x20000, v10
    v_add_u32 v13, 0x20000, v11
    """)
    ws_ptr(a, S_PA, WS_Z); ws_ptr(a, S_PB, WS_XT)
    a.wait_lg()
    a(f"s_add_u32 s{S_NONCE}, s{S_NONCE}, 1")
    a("s_barrier")
    a.ds(f"ds_read_b128 {v(T,4)}, v8", "a")
    a.ds(f"ds_read_b128 {v(T+4,4)}, v9", "b")
    a.ds(f"ds_read_b128 {v(T+8,4)}, v8 offset:8192", "c")
    a.ds(f"ds_read_b128 {v(T+12,4)}, v9 offset:8192", "d")
    a(f"v_lshlrev_b32 v14, 4, v0\nv_add_u32 v15, {L_ST}, v14\nv_and_b32 v15, 0xffffffff, v15")
    a(f"v_min_u32 v15, {L_ST+48}, v15")
    a.ds(f"ds_read_b128 {v(T+16,4)}, v15", "e")
    a.wait_lg("a"); a.vm(f"global_store_dwordx4 v10, {v(T,4)}, {sp(S_PA)} sc1")
    a.wait_lg("b"); a.vm(f"global_store_dwordx4 v12, {v(T+4,4)}, {sp(S_PA)} sc1")
    a.wait_lg("c"); a.vm(f"global_store_dwordx4 v11, {v(T+8,4)}, {sp(S_PB)} sc1")
    a.wait_lg("d"); a.vm(f"global_store_dwordx4 v13, {v(T+12,4)}, {sp(S_PB)} sc1")
    a(f"""
    s_lshl_b32 s{S_T0}, s2, 6
    s_add_u32 s{S_T0}, s{S_T0}, {WS_ST}
    v_add_u32 v14, s{S_T0}, v14
    """)
    a.wait_lg()
    sk = a.label("st")
    a(f"""
    s_cmp_lg_u32 s3, 0
    s_cbranch_scc1 {sk}
    s_mov_b64 exec, 15
    global_store_dwordx4 v14, {v(T+16,4)}, {sp(S_WS)} sc1
    s_mov_b64 exec, -1
    {sk}:
    """)
    a.stamp()
    a.wait_vm("kf")
    a(f"""
    v_cmp_eq_u32 vcc, 0, v0
    v_lshlrev_b32 v8, 4, v0
    v_add_u32 v8, {L_KF+32}, v8
    v_cndmask_b32 v{KX+8}, v{KX+8}, v90, vcc
    v_cndmask_b32 v{KX+9}, v{KX+9}, v90, vcc
    """)
    OK = 112
    for ch in range(2):
        X = KX + 4*ch; P = KX + 8 + ch; o = OK + 4*ch
        a(f"v_alignbit_b32 v{o}, v{X}, v{P}, 16")
        for i in range(1, 4): a(f"v_alignbit_b32 v{o+i}, v{X+i}, v{X+i-1}, 16")
        b = ch * 4 * KF_PITCH
        a.ds(f"ds_write_b128 v8, {v(X,4)} offset:{b}")
        a.ds(f"ds_write_b128 v8, {v(o,4)} offset:{b+KF_PITCH}")
        a(f"v_add_u32 v9, {b+2*KF_PITCH+4}, v8\nv_add_u32 v10, {b+3*KF_PITCH+4}, v8")
        a.ds(f"ds_write2_b32 v9, v{X}, v{X+1} offset0:0 offset1:1")
        a.ds(f"ds_write2_b32 v9, v{X+2}, v{X+3} offset0:2 offset1:3")
        a.ds(f"ds_write2_b32 v10, v{o}, v{o+1} offset0:0 offset1:1")
        a.ds(f"ds_write2_b32 v10, v{o+2}, v{o+3} offset0:2 offset1:3")
    a.wait_lg()
    publish(a, WS_FLAG0, 2)
    a.stamp()
    CA = 16
    a(f"""
    v_and_b32 v3, 15, v2                    ; j / n'
    v_lshrrev_b32 v4, 4, v2                 ; g
    v_add_u32 v5, 4, v3
    v_and_b32 v5, 0x1c, v5                  ; roundup4(j+1)
    v_sub_u32 v6, v5, v3
    v_subrev_u32 v6, 1, v6                  ; a'
    s_lshr_b32 s{S_T0}, s3, 1               ; ch (0/1)
    s_and_b32 s{S_T1}, s3, 1                ; r half
    s_mul_i32 s{S_T3}, s{S_T0}, {4*KF_PITCH}
    s_lshl_b32 s{S_PC}, s{S_T1}, 8          ; 4 r * 64B
    s_add_u32 s{S_T3}, s{S_T3}, s{S_PC}
    s_add_u32 s{S_T3}, s{S_T3}, {L_KF}
    v_mul_u32_u24 v6, {KF_PITCH}, v6
    v_lshl_add_u32 v5, v4, 3, v5
    v_lshl_add_u32 v6, v5, 1, v6
    v_add_u32 v6, s{S_T3}, v6
    """)
    for r in range(4):
        for m in range(8):
            f = CA + 4*(8*r + m); off = 64*(8*m + r)
            a.ds(f"ds_read_b64 {v(f,2)}, v6 offset:{off}")
            a.ds(f"ds_read_b64 {v(f+2,2)}, v6 offset:{off+8}")
    a(f"""
    s_mul_i32 s{S_RB}, s{S_TB}, 37
    s_lshr_b32 s{S_RB}, s{S_RB}, 8          ; slot/7
    s_mul_i32 s{S_FT}, s{S_RB}, 7
    s_sub_u32 s{S_FT}, s{S_TB}, s{S_FT}     ; slot%7
    s_cmp_lt_u32 s{S_TB}, 28
    s_cselect_b32 s{S_ACTV}, 1, 0
    s_and_b32 s{S_RB}, s{S_RB}, 3
    s_and_b32 s{S_PC}, s{S_CG}, 1
    s_mul_i32 s{S_PC}, s{S_PC}, 7
    s_add_u32 s{S_FT}, s{S_FT}, s{S_PC}
    s_lshr_b32 s{S_PC}, s{S_CG}, 1
    s_lshl_b32 s{S_PC}, s{S_PC}, 2
    s_add_u32 s{S_RB}, s{S_RB}, s{S_PC}
    """)
    TRA = 240
    a(f"""
    v_lshrrev_b32 v7, 5, v2
    v_lshlrev_b32 v7, 9, v7
    v_lshrrev_b32 v8, 2, v3
    v_lshl_add_u32 v7, v8, 6, v7
    v_and_b32 v8, 1, v4
    v_lshl_add_u32 v7, v8, 5, v7
    v_and_b32 v8, 3, v3
    v_lshl_add_u32 v{TRA}, v8, 3, v7
    v_add_u32 v{TRA+1}, s{S_STG}, v{TRA}
    v_lshrrev_b32 v7, 2, v2
    v_mul_u32_u24 v7, 3584, v7
    v_and_b32 v8, 3, v2
    v_lshl_add_u32 v7, v8, 4, v7
    s_lshl_b32 s{S_T0}, s{S_FT}, 8
    s_lshl_b32 s{S_T1}, s3, 6
    s_add_u32 s{S_T0}, s{S_T0}, s{S_T1}
    v_add_u32 v7, s{S_T0}, v7
    """)
    for q in range(4):
        a(f"""
        s_add_u32 s{S_T0}, s3, {q}
        s_and_b32 s{S_T0}, s{S_T0}, 3
        s_mul_i32 s{S_T0}, s{S_T0}, {128*3584}
        v_add_u32 v{8+q}, s{S_T0}, v7
        """)
    items = [(j, gu) for j in range(32) for gu in range(2)]
    def w1_issue(n):
        j, gu = items[n]; q = j >> 3
        a(f"s_add_u32 m0, s{S_STG}, {(n % STG_SLOTS)*1024}")
        a(f"v_add_u32 v12, {(j & 7)*16*3584}, v{8+q}")
        a.vm(f"global_load_lds_dwordx4 v12, {sp(S_WG if gu == 0 else S_WU)}", f"w1_{n}")
    def w1_read(n):
        j, gu = items[n]; d = 128*gu + 4*j; off = (n % STG_SLOTS)*1024
        a.ds(f"ds_read_b64_tr_b16 {ar(d,2)}, v{TRA+1} offset:{off}", f"w1r_{n}")
        a.ds(f"ds_read_b64_tr_b16 {ar(d+2,2)}, v{TRA+1} offset:{off+256}", f"w1r_{n}")
    for n in range(STG_SLOTS): w1_issue(n)
    for base in range(0, 64, 8):
        a.wait_vm(f"w1_{base+7}")
        for n in range(base, base+8): w1_read(n)
        a.wait_lg()
        for n in range(base + STG_SLOTS, min(base + STG_SLOTS + 8, 64)): w1_issue(n)
    a.stamp()
    poll(a, 4, f"v_lshlrev_b32 v250, 8, v2\nv_add_u32 v250, {WS_FLAG0}, v250")
    a.stamp()
    XT, STT = 208, 216
    STT = 176
    a(f"""
    s_lshr_b32 s{S_T0}, s3, 1
    s_add_u32 s{S_T2}, s{S_T2}, s{S_T0}
    s_and_b32 s{S_T1}, s3, 1                ; half
    s_lshl_b32 s{S_T3}, s{S_T2}, 12         ; ch*4096
    s_lshl_b32 s{S_PC}, s{S_T1}, 11
    s_add_u32 s{S_T3}, s{S_T3}, s{S_PC}     ; + half*2048
    v_lshlrev_b32 v7, 4, v2
    v_add_u32 v7, s{S_T3}, v7
    s_mul_i32 s{S_T0}, s{S_T0}, {Z_PITCH}
    s_add_u32 s{S_T0}, s{S_T0}, {L_Z}
    s_add_u32 m0, s{S_T0}, s{S_PC}
    """)
    ws_ptr(a, S_PA, WS_Z); ws_ptr(a, S_PB, WS_XT)
    a.vm(f"global_load_lds_dwordx4 v7, {sp(S_PA)} sc1", "z")
    a.vm(f"global_load_lds_dwordx4 v7, {sp(S_PA)} offset:1024 sc1", "z")
    a(f"""
    v_lshlrev_b32 v8, 4, v3
    v_lshl_add_u32 v8, v4, 2, v8            ; tl
    v_lshl_add_u32 v9, v8, 1, s{S_T3}
    s_lshl_b32 s{S_PC}, s{S_T1}, 13
    s_add_u32 s{S_PC}, s{S_PC}, {WS_ST}
    v_lshl_add_u32 v10, v8, 3, s{S_PC}
    v_add_u32 v11, 4096, v10
    """)
    for i in range(4): a.vm(f"global_load_dwordx2 {v(XT+2*i,2)}, v9, {sp(S_PB)} offset:{512*i} sc1", "xs")
    for i in range(4):
        r = 10 if i < 2 else 11
        a.vm(f"global_load_dwordx4 {v(STT+8*i,4)}, v{r}, {sp(S_WS)} offset:{2048*(i&1)} sc1", "xs")
        a.vm(f"global_load_dwordx4 {v(STT+8*i+4,4)}, v{r}, {sp(S_WS)} offset:{2048*(i&1)+16} sc1", "xs")
    a(f"""
    v_lshlrev_b32 v12, 5, v3
    v_sub_u32 v12, 480, v12
    v_lshl_add_u32 v12, v4, 4, v12
    s_lshl_b32 s{S_PC}, s{S_T1}, 8
    s_add_u32 s{S_PC}, s{S_PC}, s{S_T0}
    v_add_u32 v12, s{S_PC}, v12
    v_lshlrev_b32 v13, 1, v8
    v_sub_u32 v13, {2*(2044-768)}, v13
    s_lshl_b32 s{S_PC}, s{S_T1}, 11
    s_sub_u32 s{S_PC}, s{S_T0}, s{S_PC}
    v_add_u32 v13, s{S_PC}, v13
    """)
    a.wait_vm("z")
    a("s_barrier")
    a.stamp()
    ACC = 144
    CB = 216
    NB = 6
    KVR = 242
    seq = [(rr, k) for rr in range(4) for k in range(8)]
    def b_read(n):
        rr, k = seq[n]
        a.ds(f"ds_read_b128 {v(CB+4*(n%NB),4)}, v12 offset:{512*(7-k)+64*rr}", f"b{n}")
    for n in range(NB-1): b_read(n)
    for i in range(4): a.ds(f"ds_read_b64 {v(KVR+2*i,2)}, v13 offset:{512*(3-i)}", "kvr")
    fill = []
    XN, XP = STT, STT + 1
    fill.append(lambda: (a.wait_vm("xs"), a.wait_lg("kvr")))
    fill.append(lambda: a(f"s_lshr_b32 s{S_PC}, s3, 1\ns_lshl_b32 s{S_PC}, s{S_PC}, 4\ns_lshr_b32 s{S_DV}, s{S_DV}, s{S_PC}\ns_lshl_b32 s{S_DV}, s{S_DV}, 16"))
    for i in range(4):
        for e in range(4):
            xs = XT + 2*i + (e >> 1); ks = KVR + 2*i + 1 - (e >> 1)
            m = STT + 8*i + 2*e; r = m + 1
            ux = f"v_lshlrev_b32 v14, 16, v{xs}" if e % 2 == 0 else f"v_and_b32 v14, 0xffff0000, v{xs}"
            uk = f"v_and_b32 v15, 0xffff0000, v{ks}" if e % 2 == 0 else f"v_lshlrev_b32 v15, 16, v{ks}"
            for s in (ux, uk, f"v_sub_f32 v{m}, v14, v{m}", f"v_mul_f32 v15, s{S_DV}, v15", f"v_mul_f32 v{m}, v{m}, v{r}", f"v_fma_f32 v{r}, v{m}, v15, v14"):
                fill.append(lambda s=s: a(s))
    nm = 0
    for n, (rr, k) in enumerate(seq):
        if n + NB - 1 < len(seq): b_read(n + NB - 1)
        a.wait_lg(f"b{n}")
        for c in range(k, 8):
            m = c - k
            src = "0" if (rr == 0 and k == 0) else v(ACC+4*c, 4)
            a(f"v_mfma_f32_16x16x32_bf16 {v(ACC+4*c,4)}, {v(CA+4*(8*rr+m),4)}, {v(CB+4*(n%NB),4)}, {src}")
            nm += 1
            if nm > 36 and fill: fill.pop(0)()
    while fill: fill.pop(0)()
    a.stamp()
    own = a.label("own"); join = a.label("join")
    a(f"""
    s_lshl_b32 s{S_PC}, s3, 12
    s_add_u32 s{S_PC}, s{S_PC}, {L_RED}
    v_lshl_add_u32 v14, v2, 4, s{S_PC}
    v_xor_b32 v15, 4096, v14                ; partner's
    s_nop 7
    s_cmp_eq_u32 s{S_T1}, 0
    s_cbranch_scc1 {own}
    """)
    for i in range(4): a(f"ds_write_b128 v14, {v(ACC+4*i,4)} offset:{1024*i}")
    a("s_nop 0")
    for i in range(16): a(f"v_mov_b32 v{CB+i}, v{ACC+16+i}")
    a(f"s_branch {join}\n{own}:")
    for i in range(4): a(f"ds_write_b128 v14, {v(ACC+16+4*i,4)} offset:{1024*i}")
    for i in range(16): a(f"v_mov_b32 v{CB+i}, v{ACC+i}")
    a(f"{join}:")
    a(f"""
    v_lshrrev_b32 v7, 1, v3
    v_lshlrev_b32 v7, 15, v7
    v_and_b32 v8, 1, v3
    v_lshl_add_u32 v7, v8, 5, v7
    v_lshl_add_u32 v7, v4, 3, v7
    s_lshl_b32 s{S_PC}, s{S_T1}, 20
    s_lshl_b32 s{S_T0}, s{S_T2}, 6
    s_add_u32 s{S_PC}, s{S_PC}, s{S_T0}
    v_add_u32 v7, s{S_PC}, v7
    v_add_u32 v8, 0x40000, v7
    v_add_u32 v9, 0x80000, v7
    v_add_u32 v10, 0xc0000, v7
    """)
    ws_ptr(a, S_PA, WS_H)
    a.wait_lg()
    a("s_barrier")
    for i in range(4): a.ds(f"ds_read_b128 {v(ACC+4*i,4)}, v15 offset:{1024*i}", f"r{i}")
    for i in range(4):
        a.wait_lg(f"r{i}")
        for e in range(4): a(f"v_add_f32 v{ACC+4*i+e}, v{ACC+4*i+e}, v{CB+4*i+e}")
        for e in range(4): a(f"v_fma_f32 v{ACC+4*i+e}, v{STT+8*i+2*e}, v{ACC+4*i+e}, v{STT+8*i+2*e+1}")
        a(f"v_cvt_pk_bf16_f32 v{ACC+16+2*i}, v{ACC+4*i}, v{ACC+4*i+1}")
        a(f"v_cvt_pk_bf16_f32 v{ACC+16+2*i+1}, v{ACC+4*i+2}, v{ACC+4*i+3}")
        a.vm(f"global_store_dwordx2 v{7+i}, {v(ACC+16+2*i,2)}, {sp(S_PA)} sc1")
    publish(a, WS_FLAG1, 2)
    a.stamp()
    CS = 16
    AC = 48
    HF = 112
    EP = 144
    g1done = a.label("g1done")
    a(f"s_cmp_eq_u32 s{S_ACTV}, 0\ns_cbranch_scc1 {g1done}")
    for i in range(4): a(f"v_mov_b32 v{HF+i}, s{S_ONES}")
    a("s_nop 1")
    for j in range(32):
        for gu in range(2):
            src = "0" if j == 0 else v(CS+16*gu, 16)
            a(f"v_mfma_f32_32x32x16_bf16 {v(CS+16*gu,16)}, {ar(128*gu+4*j,4)}, {v(HF,4)}, {src}")
    poll(a, 4, f"v_lshlrev_b32 v250, 8, v2\nv_add_u32 v250, {WS_FLAG1}, v250")
    a.stamp()
    a(f"""
    s_lshl_b32 s{S_T0}, s{S_RB}, 17
    s_lshl_b32 s{S_T1}, s3, 13
    s_add_u32 s{S_T0}, s{S_T0}, s{S_T1}
    v_lshl_add_u32 v7, v2, 4, s{S_T0}
    """)
    for i in range(4):
        for hh in range(2):
            a(f"s_add_u32 m0, s{S_T1}, {32768*i + 4096*hh}")
            a(f"v_add_u32 v8, {32768*i + 4096*hh}, v7")
            for p in range(4):
                a.vm(f"global_load_lds_dwordx4 v8, {sp(S_PA)} offset:{1024*p} sc1", f"h{i}")
    for q in range(4):
        a(f"""
        s_add_u32 s{S_T0}, s3, {q}
        s_and_b32 s{S_T0}, s{S_T0}, 3
        s_lshl_b32 s{S_T0}, s{S_T0}, 13
        v_add_u32 v{8+q}, s{S_T0}, v{TRA}
        """)
    a(f"""
    v_lshlrev_b32 v12, 3, v0
    v_add_u32 v12, {L_ST}, v12
    v_and_b32 v13, 31, v2
    v_lshlrev_b32 v13, 3, v13
    v_add_u32 v13, {L_ST}, v13
    s_mul_i32 s{S_T0}, s{S_RB}, {4*112*1024}
    s_lshl_b32 s{S_T1}, s{S_FT}, 13
    s_add_u32 s{S_T0}, s{S_T0}, s{S_T1}
    s_lshl_b32 s{S_T1}, s3, 11
    s_add_u32 s{S_T0}, s{S_T0}, s{S_T1}
    v_lshl_add_u32 v14, v2, 4, s{S_T0}
    """)
    ws_ptr(a, S_PB, WS_ACT)
    PD = 5
    SM, SA, SD_ = EP, EP+1, EP+2
    P1, P2 = EP+8, EP+9
    SP = EP+12
    ET = EP+28
    def h_read(i, j):
        n = 32*i + j; d = HF + 4*(n % 8); q = j >> 3
        off = 32768*(i & 1) + 1024*(j & 7)
        return [lambda: a.ds(f"ds_read_b64_tr_b16 {v(d,2)}, v{8+q} offset:{off}", f"hr{n}"),
                lambda: a.ds(f"ds_read_b64_tr_b16 {v(d+2,2)}, v{8+q} offset:{off+256}", f"hr{n}")]
    def epilogue(i):
        ops = []
        ac = AC + 32*(i & 1); o = 4*(i & 1)
        def E(s): ops.append(lambda: a(s))
        for s in range(2):
            for g4 in range(2):
                rs = [8*s + 4*g4 + e for e in range(4)]
                for e, r in enumerate(rs): E(f"v_fma_f32 v{ET+e}, v{SM+o}, v{CS+r}, v{ac+r}")
                for e, r in enumerate(rs): E(f"v_mul_f32 v{ET+e}, v{SA+o}, v{ET+e}")
                for e, r in enumerate(rs):
                    E(f"v_exp_f32 v{ET+e}, v{ET+e}")
                    E(f"v_fma_f32 v{ET+4+e}, v{SM+o}, v{CS+16+r}, v{ac+16+r}")
                for e, r in enumerate(rs): E(f"v_fma_f32 v{ET+e}, v{ET+e}, v{SD_+o}, v{SD_+o}")
                for e, r in enumerate(rs): E(f"v_rcp_f32 v{ET+e}, v{ET+e}")
                E("s_nop 0")
                for e, r in enumerate(rs): E(f"v_mul_f32 v{ET+4+e}, v{ET+4+e}, v{ET+e}")
                pk = ET + 8 + 4*s + 2*g4
                E(f"v_cvt_pk_bf16_f32 v{pk}, v{ET+4}, v{ET+5}")
                E(f"v_cvt_pk_bf16_f32 v{pk+1}, v{ET+6}, v{ET+7}")
            ops.append(lambda s=s: a.vm(f"global_store_dwordx4 v14, {v(ET+8+4*s,4)}, {sp(S_PB)} offset:{1024*s} sc1", "act"))
        E(f"v_add_u32 v14, {112*1024}, v14")
        return ops
    def stats_final(i):
        ops = []
        o = 4*(i & 1)
        def E(s): ops.append(lambda: a(s))
        for w in range(4):
            ops.append(lambda w=w: a.ds(f"ds_read2_b64 {v(SP+4*w,4)}, v13 offset0:{64*w} offset1:{64*w+32}", "sp"))
        ops.append(lambda: a.wait_lg("sp"))
        for c in range(2):
            E(f"v_add_f32 v{SP+c}, v{SP+c}, v{SP+2+c}")
            E(f"v_add_f32 v{SP+4+c}, v{SP+4+c}, v{SP+6+c}")
            E(f"v_add_f32 v{SP+8+c}, v{SP+8+c}, v{SP+10+c}")
            E(f"v_add_f32 v{SP+12+c}, v{SP+12+c}, v{SP+14+c}")
        for c in range(2):
            E(f"v_add_f32 v{SP+c}, v{SP+c}, v{SP+4+c}")
            E(f"v_add_f32 v{SP+8+c}, v{SP+8+c}, v{SP+12+c}")
        for c in range(2): E(f"v_add_f32 v{SP+c}, v{SP+c}, v{SP+8+c}")
        tmp = K(); ln_finalize(tmp, SP, SP+1, SP+2)
        for l in tmp.body: E(l.strip())
        E(f"v_rcp_f32 v{SA+o}, v{SP+1}")
        E(f"v_sub_f32 v{SM+o}, 0, v{SP}")
        E(f"v_mov_b32 v{SD_+o}, v{SP+1}")
        E(f"v_mul_f32 v{SA+o}, 0xbfb8aa3b, v{SA+o}")
        return ops
    a.wait_vm("h0"); a("s_barrier")
    a.stamp()
    for j in range(PD):
        for f in h_read(0, j): f()
    BARJ = 32 - PD - 1
    for i in range(4):
        ac = AC + 32*(i & 1)
        ep = epilogue(i-1) if i > 0 else []
        late = []
        for j in range(32):
            n = 32*i + j; hf = HF + 4*(n % 8)
            q = [[], []]
            nj = j + PD
            if j == BARJ:
                def bar(i=i):
                    if i < 3: a.wait_vm(f"h{i+1}")
                    a.wait_lg("pw"); a("s_barrier")
                q[0].append(bar)
                late = stats_final(i)
            if i == 1 and nj >= 32 and (nj - 32) == 0:
                pass
            rd = []
            if nj < 32: rd = h_read(i, nj)
            elif i < 3:
                rd = h_read(i+1, nj-32)
            tgt_i, tgt_j = (i, nj) if nj < 32 else (i+1, nj-32)
            if tgt_i == 2 and (tgt_j & 7) == 0:
                qq = tgt_j >> 3
                rd = [lambda qq=qq: a(f"v_add_u32 v{8+qq}, 0x10000, v{8+qq}")] + rd
            q[0] += rd[:len(rd)-1]; q[1] += rd[len(rd)-1:]
            if j < 8:
                for d in range(4):
                    first = (j == 0 and d == 0)
                    q[d >> 1].append(lambda d=d, first=first, hf=hf: a(f"v_dot2_f32_bf16 v{P1}, v{hf+d}, s{S_ONES}, " + ("0" if first else f"v{P1}")))
                    q[d >> 1].append(lambda d=d, first=first, hf=hf: a(f"v_dot2_f32_bf16 v{P2}, v{hf+d}, v{hf+d}, " + ("0" if first else f"v{P2}")))
            elif j == 9:
                q[1].append(lambda: a.ds(f"ds_write_b64 v12, v[{P1}:{P2}]", "pw"))
            if j >= 8:
                src = late if j > BARJ else ep
                cnt = 4
                for g in range(2):
                    for _ in range(cnt):
                        if src: q[g].append(src.pop(0))
            a.wait_lg(f"hr{n}")
            for gu in range(2):
                src = "0" if j == 0 else v(ac+16*gu, 16)
                a(f"v_mfma_f32_32x32x16_bf16 {v(ac+16*gu,16)}, {ar(128*gu+4*j,4)}, {v(hf,4)}, {src}")
                for f in q[gu]: f()
        assert not ep, len(ep)
        while late: late.pop(0)()
        if i < 3: a("s_barrier")
    a("s_nop 7\ns_nop 7")
    a.stamp()
    for f in epilogue(3): f()
    a(f"s_lshl_b32 s{S_T1}, s{S_RB}, 4\ns_add_u32 s{S_T1}, s{S_T1}, s{S_FT}")
    publish(a, WS_FLAG2, S_T1)
    a(f"{g1done}:")
    a.vmq = []; a.lgq = []
    a.stamp()
    a(f"""
    s_and_b32 s{S_T2}, s{S_TB}, 7           ; dt
    s_lshr_b32 s{S_T3}, s{S_TB}, 3          ; p
    s_lshl_b32 s{S_STG}, s3, 15
    v_bfe_u32 v7, v2, 2, 3
    v_lshlrev_b32 v7, 10, v7
    v_lshrrev_b32 v8, 5, v2
    v_lshl_add_u32 v7, v8, 6, v7
    v_and_b32 v8, 3, v2
    v_lshl_add_u32 v7, v8, 4, v7
    s_mul_i32 s{S_T0}, s3, {448*1024}
    s_lshl_b32 s{S_T1}, s{S_T2}, 7
    s_add_u32 s{S_T0}, s{S_T0}, s{S_T1}
    v_add_u32 v7, s{S_T0}, v7
    v_and_b32 v9, 0xff, v{TRA}
    v_lshrrev_b32 v8, 5, v2
    v_lshl_add_u32 v9, v8, 8, v9
    v_add_u32 v10, s{S_STG}, v9
    s_barrier
    """)
    NS2 = 32
    def w2_issue(n):
        a(f"s_add_u32 m0, s{S_STG}, {(n % NS2)*1024}")
        a(f"v_add_u32 v12, {n*8192}, v7")
        a.vm(f"global_load_lds_dwordx4 v12, {sp(S_WD)}", f"w2_{n}")
    def w2_read(n):
        s, rdn = n >> 1, n & 1
        for dt in range(2):
            a.ds(f"ds_read_b64_tr_b16 {ar(8*s + 4*dt + 2*rdn, 2)}, v10 offset:{(n % NS2)*1024 + 512*dt}")
    for n in range(NS2): w2_issue(n)
    for base in range(0, 56, 8):
        a.wait_vm(f"w2_{base+7}")
        for n in range(base, base+8): w2_read(n)
        a.wait_lg()
        for n in range(base + NS2, min(base + NS2 + 8, 56)): w2_issue(n)
    a.stamp()
    poll(a, 1, f"""
    s_lshl_b32 s{S_T0}, s{S_CG}, 1
    s_lshr_b32 s{S_T1}, s{S_T3}, 1
    s_add_u32 s{S_T0}, s{S_T0}, s{S_T1}
    s_lshl_b32 s{S_T0}, s{S_T0}, 10
    s_add_u32 s{S_T0}, s{S_T0}, {WS_FLAG2}
    v_min_u32 v250, 13, v2
    v_lshl_add_u32 v250, v250, 6, s{S_T0}
    """)
    a.stamp()
    a(f"""
    s_lshl_b32 s{S_T0}, s{S_CG}, 3
    s_lshl_b32 s{S_T1}, s{S_T3}, 1
    s_add_u32 s{S_T0}, s{S_T0}, s{S_T1}     ; tb0
    s_lshr_b32 s{S_T1}, s3, 1
    s_add_u32 s{S_PC}, s{S_T0}, s{S_T1}
    s_lshl_b32 s{S_PC+1}, s{S_PC}, 15
    s_lshl_b32 s{S_T1}, s{S_T2}, 12
    s_add_u32 s{S_PC+1}, s{S_PC+1}, s{S_T1}
    s_and_b32 s{S_T1}, s3, 1
    s_lshl_b32 s{S_T1}, s{S_T1}, 11
    s_add_u32 s{S_PC+1}, s{S_PC+1}, s{S_T1}
    v_lshl_add_u32 v11, v2, 4, s{S_PC+1}
    s_mov_b32 m0, s{S_STG}
    s_mul_i32 s{S_T0}, s{S_T0}, {112*1024}
    s_mul_i32 s{S_T1}, s3, {28*1024}
    s_add_u32 s{S_T0}, s{S_T0}, s{S_T1}
    v_lshl_add_u32 v12, v2, 4, s{S_T0}
    v_add_u32 v13, {112*1024}, v12          ; tt=1
    """)
    ws_ptr(a, S_PA, WS_H); ws_ptr(a, S_PB, WS_ACT)
    a.vm(f"global_load_lds_dwordx4 v11, {sp(S_PA)} sc1", "hres")
    a.vm(f"global_load_lds_dwordx4 v11, {sp(S_PA)} offset:1024 sc1", "hres")
    A2 = 16
    bufs = [v(80+4*i, 4) for i in range(40)] + [ar(224+4*i, 4) for i in range(8)]
    NBUF = len(bufs)
    def act_issue(n):
        s, tt = n >> 1, n & 1
        if s and s % 4 == 0: a(f"v_add_u32 v{12+tt}, 4096, v{12+tt}")
        a.vm(f"global_load_dwordx4 {bufs[n % NBUF]}, v{12+tt}, {sp(S_PB)} offset:{1024*(s%4)} sc1", f"af{n}")
    for n in range(NBUF): act_issue(n)
    HR = 242
    a.wait_vm("hres")
    for q in range(4): a.ds(f"ds_read_b64_tr_b16 {v(HR+2*q,2)}, v10 offset:{512*q}")
    for s in range(28):
        for tt in range(2):
            n = 2*s + tt
            a.wait_vm(f"af{n}")
            for dt in range(2):
                t = 2*tt + dt
                src = "0" if s == 0 else v(A2+16*t, 16)
                a(f"v_mfma_f32_32x32x16_bf16 {v(A2+16*t,16)}, {ar(8*s+4*dt,4)}, {bufs[n % NBUF]}, {src}")
            if n + NBUF < 56: act_issue(n + NBUF)
    a.stamp()
    a(f"""
    s_lshl_b32 s{S_T0}, s3, 14
    s_add_u32 s{S_T0}, s{S_T0}, 0x10000
    v_lshl_add_u32 v7, v2, 4, s{S_T0}
    s_lshl_b32 s{S_T0}, s3, 12
    s_add_u32 s{S_T0}, s{S_T0}, 0x10000
    v_lshl_add_u32 v8, v2, 4, s{S_T0}
    s_waitcnt lgkmcnt(0)
    s_barrier
    s_nop 7
    """)
    for t in range(4):
        for q in range(4): a.ds(f"ds_write_b128 v7, {v(A2+16*t+4*q,4)} offset:{4096*t+1024*q}")
    a(f"""
    v_and_b32 v9, 31, v2
    v_lshlrev_b32 v9, 10, v9
    v_lshrrev_b32 v11, 5, v2
    v_lshl_add_u32 v9, v11, 4, v9
    s_lshl_b32 s{S_T0}, s{S_PC}, 15
    s_lshl_b32 s{S_T1}, s{S_T2}, 7
    s_add_u32 s{S_T0}, s{S_T0}, s{S_T1}
    s_and_b32 s{S_T1}, s3, 1
    s_lshl_b32 s{S_T1}, s{S_T1}, 6
    s_add_u32 s{S_T0}, s{S_T0}, s{S_T1}
    v_add_u32 v9, s{S_T0}, v9
    """)
    R = 80
    for q in range(4):
        for e in range(4):
            s = HR + 2*q + (e >> 1)
            a(f"v_lshlrev_b32 v{R+64+4*q+e}, 16, v{s}" if e % 2 == 0 else f"v_and_b32 v{R+64+4*q+e}, 0xffff0000, v{s}")
    a.wait_lg()
    a("s_barrier")
    for q in range(4):
        for w in range(4): a.ds(f"ds_read_b128 {v(R+16*w+4*q,4)}, v8 offset:{16384*w+1024*q}", f"q{q}")
    for q in range(4):
        a.wait_lg(f"q{q}")
        for e in range(4):
            x = 4*q + e
            a(f"v_add_f32 v{R+x}, v{R+x}, v{R+16+x}")
            a(f"v_add_f32 v{R+32+x}, v{R+32+x}, v{R+48+x}")
            a(f"v_add_f32 v{R+x}, v{R+x}, v{R+64+x}")
            a(f"v_add_f32 v{R+x}, v{R+x}, v{R+32+x}")
        a(f"v_cvt_pk_bf16_f32 v{A2+2*q}, v{R+4*q}, v{R+4*q+1}")
        a(f"v_cvt_pk_bf16_f32 v{A2+2*q+1}, v{R+4*q+2}, v{R+4*q+3}")
        if q & 1:
            b = A2 + 2*(q-1)
            a(f"s_nop 1\nv_permlane32_swap_b32 v{b}, v{b+2}\nv_permlane32_swap_b32 v{b+1}, v{b+3}")
            a.vm(f"global_store_dwordx4 v9, {v(b,4)}, {sp(S_OUT)} offset:{16*(q-1)}")
    a(f"""
    s_or_b32 s{S_T0}, s2, s3
    s_cmp_lg_u32 s{S_T0}, 0
    s_cbranch_scc1 L_non
    v_mov_b32 v250, 0
    v_mov_b32 v251, s{S_NONCE}
    s_mov_b64 exec, 1
    global_store_dword v250, v251, {sp(S_WS)}
    s_mov_b64 exec, -1
    L_non:
    """)
    if stamps:
        a.wait_vm(); a.stamp()
        a(f"s_cmp_lg_u32 s3, 0\ns_cbranch_scc1 L_end\ns_lshl_b32 s{S_T0}, s2, 7\ns_add_u32 s{S_T0}, s{S_T0}, {WS_STAMP}\nv_mov_b32 v250, s{S_T0}")
        for i in range(a.nstamp):
            a(f"v_mov_b32 v251, s{64+2*i}\nglobal_store_dword v250, v251, {sp(S_WS)} offset:{4*i}")
    a("L_end:\ns_endpgm")
    a.end(KN, 256, 256, 102)
    a.write(path)
    return a

if __name__ == "__main__":
    a = gen("k1.s", False); b = gen("k1s.s", True)
    print("stamps", b.nstamp)
```

```python
import sys, importlib, json, re
def pad(gen, name, phase, kw, opt, nont=False):
    a = gen.gen("p.s", 1, only=[phase], opt=opt, **kw)
    s = open("p.s").read()
    s = s.replace("_kernel:\n", "_kernel:\n    s_memrealtime s[98:99]\n", 1)
    s = s.replace("    s_mov_b32 s26, 0\n", "    s_mov_b32 s92, s26\n    s_mov_b32 s93, s27\n    s_mov_b32 s26, 0\n    s_mov_b32 s81, s98\n", 1)
    i0 = s.index("L_non:\n") + len("L_non:\n"); i1 = s.index("    s_endpgm", i0)
    body = s[i0:i1]
    fl = re.match(r"(\s+s_waitcnt lgkmcnt\(0\) ; s100\n\s+s_mov_b32 s\d+, s100\n)?", body).group(0)
    if phase == "END": fl += "    s_waitcnt vmcnt(0)\n    s_memrealtime s[100:101]\n    s_waitcnt lgkmcnt(0)\n    s_mov_b32 s81, s100\n"
    if phase == "START": fl += "    s_mov_b32 s81, s80\n"
    s = s[:i0] + fl + f"""    s_not_b32 s94, s98
    v_mov_b32 v12, 0
    v_mov_b32 v13, s94
    s_mov_b64 exec, 1
    global_atomic_umax v12, v13, s[92:93]
    s_mov_b64 exec, -1
L_pad0:
    s_memrealtime s[100:101]
    s_waitcnt lgkmcnt(0)
    s_sub_u32 s95, s100, s98
    s_cmp_lt_u32 s95, 5000
    s_cbranch_scc1 L_pad0
    global_load_dword v13, v12, s[92:93] sc1
    s_waitcnt vmcnt(0)
    v_readfirstlane_b32 s94, v13
    s_not_b32 s94, s94
    s_sub_u32 s96, s81, s94
    s_lshl_b32 s96, s96, 2
    {"s_mov_b32 s96, 0" if phase == "NONE" else ""}
    s_add_u32 s96, s96, 6000
L_pad:
    s_memrealtime s[100:101]
    s_waitcnt lgkmcnt(0)
    s_sub_u32 s95, s100, s94
    s_cmp_lt_u32 s95, s96
    s_cbranch_scc1 L_pad
""" + s[i1:]
    if nont: s = s.replace(" nt", "")
    open(name, "w").write(s)
if __name__ == "__main__":
    g = importlib.import_module(sys.argv[1]); kw = json.loads(sys.argv[2]); opt = json.loads(sys.argv[3])
    for spec in sys.argv[4:]:
        n, ph, nt = spec.split("|"); pad(g, n, ph, kw, opt, nt == "1")
```
